```python
import torch

def _softmax(x, axis=-1):
    return torch.softmax(x, dim=axis)
def _gelu(x):
    return torch.nn.functional.gelu(x, approximate="tanh")
def _silu(x):
    return torch.nn.functional.silu(x)
def _sigmoid(x):
    return torch.sigmoid(x)
def _layernorm(x, axis=-1, eps=1e-5):
    m = x.mean(dim=axis, keepdim=True)
    v = x.var(dim=axis, keepdim=True, unbiased=False)
    return (x - m) / torch.sqrt(v + eps)
def _scatter_add(tgt, idx, src, axis=0):
    return tgt.clone().index_add_(axis, idx, src)
def _segment_sum(src, seg, n):
    out = torch.zeros((n,) + src.shape[1:], dtype=src.dtype)
    return out.index_add_(0, seg, src)
def _pad(x, pw):
    flat = tuple(v for pair in reversed(pw) for v in pair)
    return torch.nn.functional.pad(x, flat)

kernel_name = 'concat_heads__softmax_full_mha__compressed_kv_cla__prompt'

def setup_inputs():

    _w = (lambda a: (lambda t: t.to(torch.bfloat16) if t.is_floating_point() else t)(torch.as_tensor(a)))
    def _A_setup():
        B, S, D = 1, 2048, 448
        return {
            "x": _w((lambda *s: torch.randn(*s, dtype=torch.bfloat16) * 0.4)(B, S, D)),
            "wqkv": _w((lambda *s: torch.randn(*s, dtype=torch.bfloat16) * 0.4)(D, 3 * D)),
            "wo": _w((lambda *s: torch.randn(*s, dtype=torch.bfloat16) * 0.05)(D, D)),
        }
    _A_in = _A_setup()

    def _B_setup():
        B, H, Sq, Sk, D, M = 1, 16, 2048, 2048, 256, 448
        Dc = 4 * D
        return {
            "x": _w((lambda *s: torch.randn(*s, dtype=torch.bfloat16) * 0.2)(B, Sq, M)),
            "c_kv": _w((lambda *s: torch.randn(*s, dtype=torch.bfloat16) * 1.6)(B, Sk, Dc)),
            "w_q": _w((lambda *s: torch.randn(*s, dtype=torch.bfloat16) * 3.2)(M, H, D) * (M ** -0.5)),
            "w_uk": _w((lambda *s: torch.randn(*s, dtype=torch.bfloat16) * 3.2)(Dc, H, D) * (Dc ** -0.5)),
            "w_uv": _w((lambda *s: torch.randn(*s, dtype=torch.bfloat16) * 1.6)(Dc, H, D) * (Dc ** -0.5)),
            "w_o": _w((lambda *s: torch.randn(*s, dtype=torch.bfloat16) * 1.6)(H, D, M) * ((H * D) ** -0.5)),
        }
    _B_in = _B_setup()

    return {
        "A_x": _A_in["x"],
        "A_wqkv": _A_in["wqkv"],
        "A_wo": _A_in["wo"],
        "B_x": _B_in["x"],
        "B_c_kv": _B_in["c_kv"],
        "B_w_q": _B_in["w_q"],
        "B_w_uk": _B_in["w_uk"],
        "B_w_uv": _B_in["w_uv"],
        "B_w_o": _B_in["w_o"],
    }

def reference(A_x, A_wqkv, A_wo, B_x, B_c_kv, B_w_q, B_w_uk, B_w_uv, B_w_o):
    def _A_ref(x, wqkv, wo):
        B, S, D = x.shape
        H = 16; Dh = D // H
        qkv = (lambda x, *d: x.permute(*d))((x @ wqkv).reshape(B, S, 3, H, Dh), 2, 0, 3, 1, 4)
        q, k, v = qkv[0], qkv[1], qkv[2]
        scale = Dh ** -0.5
        scores = torch.einsum("bhqd,bhkd->bhqk", q, k) * scale
        p = _softmax(scores, axis=-1)
        o = torch.einsum("bhqk,bhkd->bhqd", p, v)
        return (lambda x, *d: x.permute(*d))(o, 0, 2, 1, 3).reshape(B, S, D) @ wo

    def _B_ref(x, c_kv, w_q, w_uk, w_uv, w_o):
        B, Sq, M = x.shape[0], x.shape[1], x.shape[2]
        Sk = c_kv.shape[1]
        H, D = w_q.shape[1], w_q.shape[2]
        q = torch.einsum("bqm,mhd->bhqd", x, w_q)
        k = torch.einsum("bkc,chd->bhkd", c_kv, w_uk)
        v = torch.einsum("bkc,chd->bhkd", c_kv, w_uv)
        scores = torch.einsum("bhqd,bhkd->bhqk", q, k) * (D ** -0.5)
        off = Sk - Sq
        qi = torch.arange(Sq)[:, None]
        kj = torch.arange(Sk)[None, :]
        cmask = kj <= (qi + off)
        scores = torch.where(cmask[None, None], scores, -1e9)
        p = _softmax(scores, axis=-1)
        ctx = torch.einsum("bhqk,bhkd->bhqd", p, v)
        return torch.einsum("bhqd,hdm->bqm", ctx, w_o)

    a = _A_ref(A_x, A_wqkv, A_wo)
    b = _B_ref(B_x, B_c_kv, B_w_q, B_w_uk, B_w_uv, B_w_o)
    return torch.concatenate([a, b], axis=-1)
```

```python
import sys
HDR = """; @launch kernel={name}_kernel grid=({grid},1,1) block=({block},1,1) lds={lds}
.amdgcn_target "amdgcn-amd-amdhsa--gfx950"
.text
.globl {name}_kernel
.p2align 8
.type {name}_kernel,@function
{name}_kernel:
"""
FTR = """
s_endpgm
.section .rodata,"a"
.p2align 6
.amdhsa_kernel {name}_kernel
  .amdhsa_next_free_vgpr {nfv}
  .amdhsa_next_free_sgpr 102
  .amdhsa_accum_offset {acc}
  .amdhsa_group_segment_fixed_size 0
  .amdhsa_kernarg_size 96
  .amdhsa_user_sgpr_count 2
  .amdhsa_user_sgpr_kernarg_segment_ptr 1
  .amdhsa_system_sgpr_workgroup_id_x 1
.end_amdhsa_kernel
"""
PRO = """
s_load_dwordx2 s[4:5], s[0:1], 0
s_load_dwordx2 s[6:7], s[0:1], 72
s_waitcnt lgkmcnt(0)
s_mov_b32 s8, s4
s_mov_b32 s9, s5
s_mov_b32 s10, 0x4000000
s_mov_b32 s11, 0x20000
s_mov_b32 s12, s6
s_mov_b32 s13, s7
s_mov_b32 s14, 0x1000000
s_mov_b32 s15, 0x20000
v_lshrrev_b32 v2, 6, v0
s_nop 1
v_readfirstlane_b32 s20, v2
v_and_b32 v3, 63, v0             ; lane
"""
def EPI(nw):
    return f"""
s_waitcnt vmcnt(0) lgkmcnt(0)
s_memtime s[32:33]
s_waitcnt lgkmcnt(0)
s_sub_u32 s34, s32, s30
s_mul_i32 s35, s2, {nw}
s_add_u32 s35, s35, s20
s_lshl_b32 s35, s35, 2
v_mov_b32 v4, s34
v_mov_b32 v5, s35
v_cmp_eq_u32 vcc, 0, v3
s_and_saveexec_b64 s[36:37], vcc
buffer_store_dword v4, v5, s[12:15], 0 offen
s_waitcnt vmcnt(0)
"""

def dma_bw(name, nw=4, niter=64, per=8, inflight=24, region=2<<20, share=8, mfma=0):
    s = HDR.format(name=name, grid=256, block=64*nw, lds=131072) + PRO
    s += f"""
s_and_b32 s21, s2, {share-1}
s_mul_i32 s21, s21, {region}
s_lshr_b32 s26, s2, 3
s_mul_i32 s26, s26, 0
v_lshlrev_b32 v1, 4, v3             ; lane*16
s_lshl_b32 s22, s20, 10             ; wave*1KB
s_mul_i32 s23, s20, {per*1024}
s_mov_b32 s24, 0
s_mov_b32 s25, {niter}
s_barrier
s_memtime s[30:31]
s_waitcnt lgkmcnt(0)
L_loop:
"""
    for i in range(per):
        s += f"""s_add_u32 m0, s23, {i*1024}
s_add_u32 s27, s24, s22
s_add_u32 s27, s27, s21
buffer_load_dwordx4 v1, s[8:11], s27 offen lds
s_add_u32 s24, s24, {nw*1024}
s_and_b32 s24, s24, {region-1}
"""
        for m in range(mfma):
            s += f"v_mfma_f32_32x32x16_bf16 v[16:31], v[8:11], v[12:15], v[16:31]\n"
    s += f"""s_waitcnt vmcnt({inflight-per})
s_xor_b32 s23, s23, {32768}
s_sub_u32 s25, s25, 1
s_cmp_lg_u32 s25, 0
s_cbranch_scc1 L_loop
"""
    s += EPI(nw) + FTR.format(name=name, nfv=128, acc=128)
    open(name + ".s", "w").write(s)

if __name__ == "__main__":
    dma_bw("dma1", nw=4, niter=64, per=8, inflight=24)
    dma_bw("dma2", nw=4, niter=64, per=8, inflight=48)
    dma_bw("dma3", nw=8, niter=64, per=4, inflight=16)
    dma_bw("dma4", nw=4, niter=64, per=8, inflight=24, mfma=4)
    dma_bw("dma5", nw=4, niter=64, per=8, inflight=24, mfma=2)
```

```python
from mb_gen import *
def EPI2(nw):
    return f"""
s_waitcnt vmcnt(0) lgkmcnt(0)
s_memtime s[32:33]
s_memrealtime s[40:41]
s_waitcnt lgkmcnt(0)
s_sub_u32 s34, s32, s30
s_sub_u32 s42, s40, s38
s_mul_i32 s35, s2, {nw}
s_add_u32 s35, s35, s20
s_lshl_b32 s35, s35, 2
v_mov_b32 v4, s34
v_mov_b32 v6, s42
v_mov_b32 v5, s35
v_cmp_eq_u32 vcc, 0, v3
s_and_saveexec_b64 s[36:37], vcc
buffer_store_dword v4, v5, s[12:15], 0 offen
v_add_u32 v5, 0x10000, v5
buffer_store_dword v6, v5, s[12:15], 0 offen
s_waitcnt vmcnt(0)
"""
def loop(name, bodies, nw=4, niter=256, nfv=128, lds=131072, init=""):
    s = HDR.format(name=name, grid=256, block=64*nw, lds=lds) + PRO
    s += "v_lshlrev_b32 v1, 4, v3\n"
    s += "buffer_load_dwordx4 v[8:11], v1, s[8:11], 0 offen\nbuffer_load_dwordx4 v[12:15], v1, s[8:11], 0 offen offset:1024\n"
    for r in range(16, 100): s += f"v_mov_b32 v{r}, 0\n"
    s += init
    s += f"s_waitcnt vmcnt(0)\ns_mov_b32 s25, {niter}\ns_barrier\ns_memtime s[30:31]\ns_memrealtime s[38:39]\ns_waitcnt lgkmcnt(0)\n"
    s += "s_lshr_b32 s21, s20, 2\n"
    for g in range(1, len(bodies)):
        s += f"s_cmp_eq_u32 s21, {g}\ns_cbranch_scc1 L_loop{g}\n"
    for g, b in enumerate(bodies):
        s += f".p2align 6\nL_loop{g}:\n" + b + f"s_sub_u32 s25, s25, 1\ns_cmp_lg_u32 s25, 0\ns_cbranch_scc1 L_loop{g}\ns_branch L_end\n"
    s += "L_end:\n" + EPI2(nw) + FTR.format(name=name, nfv=nfv, acc=nfv)
    open(name + ".s", "w").write(s)

def rep(f, n): return "".join(f(i) for i in range(n))
exp = lambda i: f"v_exp_f32 v{32+i%32}, v{64+i%32}\n"
fma = lambda i: f"v_fma_f32 v{32+i%32}, v{64+i%32}, v{64+(i+1)%32}, v{64+(i+2)%32}\n"
add = lambda i: f"v_add_f32 v{32+i%32}, v{64+i%32}, v{64+(i+1)%32}\n"
pka = lambda i: f"v_pk_add_f32 v[{32+2*(i%16)}:{33+2*(i%16)}], v[{64+2*(i%16)}:{65+2*(i%16)}], v[{64+2*((i+1)%16)}:{65+2*((i+1)%16)}]\n"
mx3 = lambda i: f"v_max3_f32 v{32+i%32}, v{64+i%32}, v{64+(i+1)%32}, v{64+(i+2)%32}\n"
cvt = lambda i: f"v_cvt_pk_bf16_f32 v{32+i%32}, v{64+i%32}, v{64+(i+1)%32}\n"
mf = lambda i: f"v_mfma_f32_32x32x16_bf16 v[16:31], v[8:11], v[12:15], v[16:31]\n"
mf2 = lambda i: f"v_mfma_f32_32x32x16_bf16 v[100:115], v[8:11], v[12:15], v[100:115]\n"
names = []
for nm, f in [("exp", exp), ("fma", fma), ("add", add), ("pka", pka), ("mx3", mx3), ("cvt", cvt)]:
    loop(f"v1_{nm}", [rep(f, 64)], nw=4); names.append(f"v1_{nm}")
    loop(f"v2_{nm}", [rep(f, 64)]*2, nw=8); names.append(f"v2_{nm}")
loop("v4_exp", [rep(exp, 64)]*4, nw=16); names.append("v4_exp")
loop("v4_add", [rep(add, 64)]*4, nw=16); names.append("v4_add")
loop("m1", [rep(mf, 64)], nw=4); names.append("m1")
loop("m_exp", [rep(mf, 32), rep(exp, 128)], nw=8); names.append("m_exp")
loop("m_add", [rep(mf, 32), rep(add, 256)], nw=8); names.append("m_add")
loop("m_add2", [rep(mf, 32), rep(add, 192)], nw=8); names.append("m_add2")
print(" ".join(names))
```

```python
from mb_gen2 import *
names=[]
def wr(name, kb_per_wave, mods, pace=0, grid=256):
    s = HDR.format(name=name, grid=grid, block=256, lds=131072) + PRO
    s += f"""
s_load_dwordx2 s[16:17], s[0:1], 88
s_waitcnt lgkmcnt(0)
s_mov_b32 s18, 0x10000000
s_mov_b32 s19, 0x20000
v_lshlrev_b32 v1, 4, v3
s_lshl_b32 s21, s2, 2
s_add_u32 s21, s21, s20
s_mul_i32 s21, s21, {kb_per_wave*1024}
v_mov_b32 v8, v0
v_mov_b32 v9, v0
v_mov_b32 v10, v0
v_mov_b32 v11, v0
s_barrier
s_memtime s[30:31]
s_memrealtime s[38:39]
s_waitcnt lgkmcnt(0)
s_mov_b32 s25, {kb_per_wave}
L_loop:
buffer_store_dwordx4 v[8:11], v1, s[16:19], s21 offen {mods}
s_add_u32 s21, s21, 1024
{"s_sleep %d" % pace if pace else ""}
s_sub_u32 s25, s25, 1
s_cmp_lg_u32 s25, 0
s_cbranch_scc1 L_loop
"""
    s += EPI2(4) + FTR.format(name=name, nfv=64, acc=64)
    open(name + ".s", "w").write(s); names.append(name + ".s")
for g in (256, 128, 64, 8):
    wr(f"wg{g}_plain", 32, "", grid=g)
    wr(f"wg{g}_sc1", 32, "sc1", grid=g)
    wr(f"wg{g}_nt", 32, "nt", grid=g)
    wr(f"wg{g}_sc1nt", 32, "sc1 nt", grid=g)
open("list8.txt","w").write(" ".join(names))
```

```python
from mb_gen2 import *
names=[]
init = "".join(f"buffer_load_dwordx4 v[{128+4*i}:{131+4*i}], v1, s[8:11], 0 offen offset:{(i%4)*1024}\n" + ("v_add_u32 v1, 4096, v1\n" if i%4==3 else "") for i in range(16))
init += "".join(f"v_mov_b32 v{r}, 0\n" for r in range(192,256))
init += "s_waitcnt vmcnt(0)\nv_lshlrev_b32 v7, 4, v0\n" + "".join(f"ds_write_b128 v7, v[{128+4*i}:{131+4*i}] offset:{i*4096}\n" for i in range(16)) + "s_waitcnt lgkmcnt(0)\n"
def mk32(fa, fb, fc):
    def f(i):
        a=128+4*fa(i); b=160+4*fb(i); c=192+16*fc(i)
        return f"v_mfma_f32_32x32x16_bf16 v[{c}:{c+15}], v[{a}:{a+3}], v[{b}:{b+3}], v[{c}:{c+15}]\n"
    return f
def mk16(fa, fb, fc):
    def f(i):
        a=128+4*fa(i); b=160+4*fb(i); c=192+4*fc(i)
        return f"v_mfma_f32_16x16x32_bf16 v[{c}:{c+3}], v[{a}:{a+3}], v[{b}:{b+3}], v[{c}:{c+3}]\n"
    return f
N=32
def add_(nm, body, **kw):
    loop(nm, [body], nw=4, niter=N, nfv=256, init=init, **kw); names.append(nm+".s")
add_("p32_same", rep(mk32(lambda i:0, lambda i:0, lambda i:0), 64))
add_("p32_sameAB4acc", rep(mk32(lambda i:0, lambda i:0, lambda i:i%4), 64))
add_("p32_A4", rep(mk32(lambda i:(i//4)%8, lambda i:i%4+4*((i//16)%2), lambda i:i%4), 64))
add_("p32_B4", rep(mk32(lambda i:i%4+4*((i//16)%2), lambda i:(i//4)%8, lambda i:i%4), 64))
add_("p32_all", rep(mk32(lambda i:i%8, lambda i:(i//8+i)%8, lambda i:i%4), 64))
add_("p32_chain", rep(mk32(lambda i:i%8, lambda i:(i//8+i)%8, lambda i:(i//16)%4), 64))
add_("p16_same", rep(mk16(lambda i:0, lambda i:0, lambda i:0), 128))
add_("p16_A8", rep(mk16(lambda i:(i//8)%8, lambda i:i%8, lambda i:i%16), 128))
add_("p16_B8", rep(mk16(lambda i:i%8, lambda i:(i//8)%8, lambda i:i%16), 128))
add_("p16_all", rep(mk16(lambda i:i%8, lambda i:(i//8+i)%8, lambda i:i%16), 128))
add_("p16_chain", rep(mk16(lambda i:i%8, lambda i:(i//8+i)%8, lambda i:(i//8)%16), 128))
m = mk32(lambda i:(i//4)%8, lambda i:i%4+4*((i//16)%2), lambda i:i%4)
add_("d32_80", rep(lambda i: m(i) + "s_nop 7\n", 64))
add_("d32_67", rep(lambda i: m(i) + "s_nop 9\n", 64))
add_("d32_50", rep(lambda i: m(i) + "s_nop 13\n", 64))
m6 = mk16(lambda i:(i//8)%8, lambda i:i%8, lambda i:i%16)
add_("d16_80", rep(lambda i: m6(i) + "s_nop 2\n", 128))
add_("d16_67", rep(lambda i: m6(i) + "s_nop 3\n", 128))
add_("l32_h", rep(lambda i: m(i) + (f"ds_read_b128 v[{32+4*(i%8)}:{35+4*(i%8)}], v7 offset:{(i%16)*4096}\n" if i%2==0 else ""), 64))
add_("l32_1", rep(lambda i: m(i) + f"ds_read_b128 v[{32+4*(i%8)}:{35+4*(i%8)}], v7 offset:{(i%16)*4096}\n", 64))
add_("l16_h", rep(lambda i: m6(i) + (f"ds_read_b128 v[{32+4*(i%8)}:{35+4*(i%8)}], v7 offset:{(i%16)*4096}\n" if i%4==0 else ""), 128))
add_("l16_1", rep(lambda i: m6(i) + (f"ds_read_b128 v[{32+4*(i%8)}:{35+4*(i%8)}], v7 offset:{(i%16)*4096}\n" if i%2==0 else ""), 128))
open("list4.txt","w").write(" ".join(names))
```

```python
from mb_gen2 import *
from mb_gen4 import init, mk16, mk32
names=[]
N=32
def add_(nm, body, **kw):
    loop(nm, [body], nw=4, niter=N, nfv=256, init=init+"s_mov_b32 m0, 0x10000\ns_mov_b32 s50, 0\n", **kw); names.append(nm+".s")
m6 = mk16(lambda i:(i//8)%8, lambda i:i%8, lambda i:i%16)
ds = lambda i: f"ds_read_b128 v[{32+4*(i%8)}:{35+4*(i%8)}], v7 offset:{(i%16)*4096}\n"
tr = lambda i: f"ds_read_b64_tr_b16 v[{32+2*(i%16)}:{33+2*(i%16)}], v7 offset:{(i%16)*4096}\n"
exp = lambda i: f"v_exp_f32 v{64+i%16}, v{80+i%16}\n"
add = lambda i: f"v_add_f32 v{64+i%16}, v{80+i%16}, v{80+(i+1)%16}\n"
cvt = lambda i: f"v_cvt_pk_bf16_f32 v{64+i%16}, v{80+i%16}, v{80+(i+1)%16}\n"
sa = lambda i: f"s_add_u32 s{50+i%4}, s{50+i%4}, 1\n"
add_("f_ds", rep(lambda i: m6(i)+ds(i), 128))
add_("f_dsexp", rep(lambda i: m6(i)+ds(i)+exp(i), 128))
add_("f_dsadd2", rep(lambda i: m6(i)+ds(i)+add(i)+add(i+5), 128))
add_("f_exp", rep(lambda i: m6(i)+exp(i), 128))
add_("f_add2", rep(lambda i: m6(i)+add(i)+add(i+5), 128))
add_("f_add3", rep(lambda i: m6(i)+add(i)+add(i+5)+add(i+9), 128))
add_("f_cvtadd", rep(lambda i: m6(i)+cvt(i)+add(i+5), 128))
add_("f_sa3", rep(lambda i: m6(i)+sa(i)+sa(i+1)+sa(i+2), 128))
add_("f_saexp", rep(lambda i: m6(i)+sa(i)+exp(i), 128))
add_("f_saadd2", rep(lambda i: m6(i)+sa(i)+add(i)+add(i+5), 128))
add_("f_dswsa", rep(lambda i: m6(i)+ds(i)+"s_waitcnt lgkmcnt(4)\n"+sa(i), 128))
add_("f_tr2", rep(lambda i: m6(i)+tr(i)+tr(i+1), 128))
add_("f_tr1", rep(lambda i: m6(i)+tr(i), 128))
add_("f_bar64", rep(lambda i: m6(i)+("s_barrier\n" if i%64==63 else ""), 128))
add_("f_bar64ds", rep(lambda i: m6(i)+(ds(i) if i%2==0 else "")+("s_waitcnt lgkmcnt(0)\ns_barrier\n" if i%64==63 else ""), 128))
dma = lambda i: "buffer_load_dwordx4 v1, s[8:11], s50 offen lds\n"
add_("f_dma8", rep(lambda i: m6(i)+(dma(i) if i%8==7 else "")+("s_add_u32 s50, s50, 4096\ns_and_b32 s50, s50, 0xfffff\n" if i%8==3 else "")+("s_waitcnt vmcnt(24)\n" if i%64==60 else ""), 128))
add_("f_dma8ds", rep(lambda i: m6(i)+(ds(i) if i%2==0 else "")+(dma(i) if i%8==7 else "")+("s_add_u32 s50, s50, 4096\ns_and_b32 s50, s50, 0xfffff\n" if i%8==3 else "")+("s_waitcnt vmcnt(24)\n" if i%64==61 else "")+("s_waitcnt lgkmcnt(0)\ns_barrier\n" if i%64==63 else ""), 128))
def att(i):
    s = m6(i)
    j = i%64
    if j%2==0: s += ds(i)
    if j%4==0: s += exp(i)
    elif j%4==2: s += add(i) + (cvt(i+3) if j%8==2 else "")
    if j%8==7: s += dma(i)
    if j%8==3: s += "s_add_u32 s50, s50, 4096\ns_and_b32 s50, s50, 0xfffff\n"
    if j%8==5: s += "s_waitcnt lgkmcnt(2)\n"
    if j==61: s += "s_waitcnt vmcnt(24)\n"
    if j==63: s += "s_waitcnt lgkmcnt(0)\ns_barrier\n"
    return s
add_("f_att16", rep(att, 128))
m3 = mk32(lambda i:(i//4)%8, lambda i:i%4+4*((i//16)%2), lambda i:i%4)
def att32(i):
    s = m3(i)
    j = i%32
    s += ds(i)
    if j%2==0: s += exp(i)
    else: s += add(i) + (cvt(i+3) if j%4==1 else "")
    if j%4==3: s += dma(i)
    if j%4==1: s += "s_add_u32 s50, s50, 4096\ns_and_b32 s50, s50, 0xfffff\n"
    if j%4==2: s += "s_waitcnt lgkmcnt(2)\n"
    if j==30: s += "s_waitcnt vmcnt(24)\n"
    if j==31: s += "s_waitcnt lgkmcnt(0)\ns_barrier\n"
    return s
add_("f_att32", rep(att32, 64))
open("list5.txt","w").write(" ".join(names))
```

```python
from mb_gen2 import *
from mb_gen4 import init, mk16
from mb_gen5 import m6, ds, exp
names=[]
def add_(nm, cond, other):
    body = rep(lambda i: m6(i) + (ds(i) if i % 2 == 0 else ""), 128)
    s = HDR.format(name=nm, grid=256, block=256, lds=131072) + PRO + "v_lshlrev_b32 v1, 4, v3\n"
    for r in range(16, 100): s += f"v_mov_b32 v{r}, 0\n"
    s += init + "s_mov_b32 s25, 32\ns_barrier\ns_memtime s[30:31]\ns_memrealtime s[38:39]\ns_waitcnt lgkmcnt(0)\n" + cond
    s += ".p2align 6\nL0:\n" + body + "s_sub_u32 s25, s25, 1\ns_cmp_lg_u32 s25, 0\ns_cbranch_scc1 L0\ns_branch L_end\nL1:\n" + other
    s += "s_sub_u32 s25, s25, 1\ns_cmp_lg_u32 s25, 0\ns_cbranch_scc1 L1\ns_endpgm\nL_end:\n" + EPI2(4) + FTR.format(name=nm, nfv=256, acc=256)
    open(nm + ".s", "w").write(s); names.append(nm + ".s")
idle = "s_sleep 32\n"
ex = rep(exp, 240)
add_("c_all", "", idle)
add_("c_halfcu", "s_bitcmp1_b32 s2, 3\ns_cbranch_scc1 L1\n", idle)
add_("c_halfxcd", "s_bitcmp1_b32 s2, 2\ns_cbranch_scc1 L1\n", idle)
add_("c_qcu", "s_lshr_b32 s44, s2, 3\ns_and_b32 s44, s44, 3\ns_cmp_lg_u32 s44, 0\ns_cbranch_scc1 L1\n", idle)
add_("c_halfexp", "s_bitcmp1_b32 s2, 3\ns_cbranch_scc1 L1\n", ex)
open("list11.txt","w").write(" ".join(names))
```

```python
from mb_gen2 import *
from mb_gen4 import init, mk16, mk32
from mb_gen5 import m6, ds, exp, add, cvt, sa, dma
names=[]
i2 = init+"s_mov_b32 m0, 0x10000\ns_mov_b32 s50, 0\nv_lshlrev_b32 v6, 3, v0\n"
def add_(nm, body, N, **kw):
    loop(nm, [body], nw=4, niter=N, nfv=256, init=i2, **kw); names.append(nm+".s")
add_("s_m4096x1", rep(m6, 4096), 1)
add_("s_m128x32", rep(m6, 128), 32)
f = lambda i: m6(i)+(ds(i)+add(i) if i%2==0 else sa(i)+exp(i+4))
add_("s_f2048x1", rep(f, 2048), 1)
add_("s_f128x16", rep(f, 128), 16)
add_("s_f2048x2", rep(f, 2048), 2)
add_("s_v4096x1", rep(cvt, 4096), 1)
add_("s_v256x16", rep(cvt, 256), 16)
pf = """s_getpc_b64 s[44:45]
s_mov_b32 s46, 65536
s_mov_b32 s47, 0x20000
v_lshlrev_b32 v5, 6, v0
""" + "".join(f"buffer_load_dword v4, v5, s[44:47], 0 offen\nv_add_u32 v5, 16384, v5\n" for i in range(3)) + "s_waitcnt vmcnt(0)\n"
loop("s_v4096pf", [rep(cvt, 4096)], nw=4, niter=1, nfv=256, init=i2+pf); names.append("s_v4096pf.s")
loop("s_a4096pf", [rep(add, 8192)], nw=4, niter=1, nfv=256, init=i2+pf); names.append("s_a4096pf.s")
open("list7.txt","w").write(" ".join(names))
```
